```python
import torch

def _softmax(x, axis=-1):
    return torch.softmax(x, dim=axis)
def _gelu(x):
    return torch.nn.functional.gelu(x, approximate="tanh")
def _silu(x):
    return torch.nn.functional.silu(x)
def _sigmoid(x):
    return torch.sigmoid(x)
def _layernorm(x, axis=-1, eps=1e-5):
    m = x.mean(dim=axis, keepdim=True)
    v = x.var(dim=axis, keepdim=True, unbiased=False)
    return (x - m) / torch.sqrt(v + eps)
def _scatter_add(tgt, idx, src, axis=0):
    return tgt.clone().index_add_(axis, idx, src)
def _segment_sum(src, seg, n):
    out = torch.zeros((n,) + src.shape[1:], dtype=src.dtype)
    return out.index_add_(0, seg, src)
def _pad(x, pw):
    flat = tuple(v for pair in reversed(pw) for v in pair)
    return torch.nn.functional.pad(x, flat)

kernel_name = 'standalone__spectral_fnet__prompt'

def setup_inputs():

    _w = (lambda a: (lambda t: t.to(torch.bfloat16) if t.is_floating_point() else t)(torch.as_tensor(a)))
    B, S, D = 1, 2048, 512
    ns = torch.arange(S)[:, None] * torch.arange(S)[None, :]
    nd = torch.arange(D)[:, None] * torch.arange(D)[None, :]
    Ws_re = torch.cos(-2.0 * torch.pi * ns / S).to(float)
    Ws_im = torch.sin(-2.0 * torch.pi * ns / S).to(float)
    Wd_re = torch.cos(-2.0 * torch.pi * nd / D).to(float)
    Wd_im = torch.sin(-2.0 * torch.pi * nd / D).to(float)
    return {
        "x": _w((lambda *s: torch.randn(*s, dtype=torch.bfloat16) * 0.05)(B, S, D)),
        "dft_seq_re": _w(Ws_re),
        "dft_seq_im": _w(Ws_im),
        "dft_hid_re": _w(Wd_re),
        "dft_hid_im": _w(Wd_im),
    }

def reference(x, dft_seq_re, dft_seq_im, dft_hid_re, dft_hid_im):
    a = torch.einsum("bsd,ed->bse", x, dft_hid_re)
    b = torch.einsum("bsd,ed->bse", x, dft_hid_im)
    y = torch.einsum("ts,bse->bte", dft_seq_re, a) - torch.einsum("ts,bse->bte", dft_seq_im, b)
    return y
```

```python
import re
TRANS = ('v_sin_f32','v_cos_f32','v_rcp_f32','v_exp_f32','v_log_f32','v_rsq_f32','v_sqrt_f32')
def regs(op):
    op = op.strip().lstrip('-')
    m = re.fullmatch(r'([vsa])(\d+)', op)
    if m: return {(m.group(1), int(m.group(2)))}
    m = re.fullmatch(r'([vsa])\[(\d+):(\d+)\]', op)
    if m: return {(m.group(1), i) for i in range(int(m.group(2)), int(m.group(3))+1)}
    if op == 'vcc': return {('s','vcc')}
    if op == 'm0': return {('s','m0')}
    if op == 'exec': return {('s','exec')}
    return set()
class Ins:
    def __init__(s, text):
        s.text = text
        t = text.split(';')[0].strip()
        s.label = t.endswith(':') or t.startswith('.') or t == ''
        p = t.split(None, 1)
        s.op = p[0] if p else ''
        ops = [o.strip() for o in re.sub(r'\s(neg_lo|neg_hi|op_sel|op_sel_hi):\[[^\]]*\]', '', p[1]).split(',')] if len(p) > 1 else []
        mods = ''
        if ops:
            q = ops[-1].split(None, 1); ops[-1] = q[0]; mods = q[1] if len(q) > 1 else ''
        s.ops = ops; s.mods = mods
        o = s.op
        s.mfma = o.startswith('v_mfma')
        s.valu = o.startswith('v_') and not s.mfma
        s.trans = any(o.startswith(x) for x in TRANS)
        s.vmem = o.startswith(('buffer_','global_'))
        s.ds = o.startswith('ds_')
        s.salu = o.startswith('s_')
        s.w = set(); s.r = set()
        R = [regs(x) for x in ops]
        if s.label: return
        if s.mfma: s.w = R[0]; s.rA = R[1] | R[2]; s.rC = R[3]; s.r = s.rA | s.rC; s.passes = 8 if '32x32' in o else 4
        elif o.startswith(('v_swap','v_permlane16_swap','v_permlane32_swap')): s.w = R[0]|R[1]; s.r = R[0]|R[1]
        elif s.valu:
            s.w = R[0]; s.r = set().union(*R[1:]) if len(R) > 1 else set()
            if o.startswith(('v_fmac','v_pk_fmac')): s.r |= R[0]
            if o.startswith('v_cndmask') and len(R) == 3: s.r |= {('s','vcc')}
        elif s.vmem:
            islds = ' lds' in (' '+mods)
            if 'load' in o and not islds: s.w = R[0]; s.r = set().union(*R[1:])
            elif 'atomic' in o and 'sc0' in mods and o.startswith('global'): s.w = R[0]; s.r = set().union(*R[1:])
            else: s.r = set().union(*R)
            if islds: s.r |= {('s','m0')}
            s.islds = islds
        elif s.ds:
            if 'read' in o: s.w = R[0]; s.r = set().union(*R[1:])
            else: s.r = set().union(*R)
        elif s.salu:
            if o.startswith(('s_cmp','s_waitcnt','s_nop','s_barrier','s_cbranch','s_branch','s_endpgm','s_setprio','s_sleep')): s.r = set().union(*R) if R else set()
            else: s.w = R[0] if R else set(); s.r = set().union(*R[1:]) if len(R) > 1 else set()
    def states(s):
        if s.label: return 0
        if s.op == 's_nop': return int(s.ops[0]) + 1
        return 1
def need(p, c):
    n = 0
    vw = {x for x in p.w if x[0] in 'va'}; sw = {x for x in p.w if x[0] == 's'}
    if p.valu:
        if c.mfma and vw & c.r: n = max(n, 2)
        if p.trans and c.valu and not c.trans and vw & c.r: n = max(n, 1)
        if p.trans and c.trans and vw & c.r: n = max(n, 1)
        if c.op.startswith(('v_readfirstlane','v_readlane')) and vw & c.r: n = max(n, 1)
        if c.op.startswith('v_permlane') and vw & c.r: n = max(n, 2)
        if 'dpp' in c.mods or 'row_' in c.mods or 'quad_perm' in c.mods:
            if vw & c.r: n = max(n, 2)
        if c.vmem and sw & c.r: n = max(n, 5)
        if c.valu and sw & c.r: n = max(n, 2)
        if c.salu and sw & c.r: n = max(n, 1)
    if p.mfma:
        big = 12 if p.passes == 8 else 8
        if c.mfma:
            if p.w & c.rA: n = max(n, big)
            if p.w & c.rC and p.w != c.rC: n = max(n, big-2)
            if p.w & c.w and p.w != c.rC: n = max(n, big)
        elif (c.valu or c.vmem or c.ds) and (p.w & (c.r | c.w)): n = max(n, big)
        if c.valu and (p.rC & c.w): n = max(n, 7 if p.passes == 8 else 3)
    if p.salu and ('s','m0') in p.w and c.vmem and getattr(c,'islds',False): n = max(n, 1)
    if p.vmem and 'store' in p.op and ('x4' in p.op or 'x3' in p.op) and (c.valu or c.mfma or c.ds or c.vmem) and (p.r & c.w): n = max(n, 2)
    return n
def fix(lines):
    out = []
    for t in lines:
        c = Ins(t)
        if not c.label:
            d = 0; req = 0
            for p in reversed(out):
                if d >= 14: break
                if not p.label:
                    req = max(req, need(p, c) - d)
                d += p.states()
            if req > 0: out.append(Ins('s_nop %d' % (req-1)))
        out.append(c)
    return [('' if i.label else '    ') + i.text for i in out]
```

```python
import sys, struct
from asmlib import fix
NAME = 'standalone__spectral_fnet__prompt'
US = 32768 + 256
HS = 1040
def fl(x): return '0x%08x' % struct.unpack('<I', struct.pack('<f', x))[0]
HDR = open('cdna_kernels/%s.s.ref' % NAME).read().split('; Override launch')[0]

def srd(d, b, n):
    return ['s_mov_b32 s%d, s%d' % (d, b), 's_and_b32 s%d, s%d, 0xffff' % (d+1, b+1),
            's_mov_b32 s%d, %d' % (d+2, n), 's_mov_b32 s%d, 0x20000' % (d+3)]

def p1_load():
    L = []
    L += ['s_and_b32 s16, s2, 15', 's_lshr_b32 s17, s2, 4',
          'v_lshrrev_b32 v3, 6, v0',
          'v_bfe_u32 v4, v0, 2, 4',
          'v_lshl_add_u32 v4, v3, 5, v4',
          'v_readfirstlane_b32 s20, v3',
          'v_bfe_u32 v5, v0, 5, 1',
          'v_lshlrev_b32 v5, 1, v5',
          'v_and_b32 v6, 3, v0',
          'v_xor_b32 v5, v5, v6',
          'v_lshlrev_b32 v5, 4, v5',
          'v_lshl_add_u32 v4, v4, 14, v5',
          's_lshl_b32 s18, s16, 10', 's_lshl_b32 s19, s17, 6', 's_add_u32 s18, s18, s19',
          's_add_u32 s19, s18, 262144',
          's_lshl_b32 s21, s20, 11', 's_add_u32 s22, s21, 1024',
          's_mov_b32 m0, s21',
          's_waitcnt lgkmcnt(0)']
    L += srd(8, 4, 2097152)
    L += ['buffer_load_dwordx4 v4, s[8:11], s18 offen lds', 's_mov_b32 m0, s22',
          'buffer_load_dwordx4 v4, s[8:11], s19 offen lds']
    return L
def p1_const():
    L = []
    L += ['v_and_b32 v1, 15, v0', 'v_bfe_u32 v2, v0, 4, 2',
          'v_lshl_add_u32 v7, v3, 4, v1',
          'v_cmp_eq_u32 vcc, 0, v7',
          'v_cvt_f32_u32 v8, v7',
          'v_cvt_f32_u32 v9, v2',
          'v_mul_f32 v8, %s, v8' % fl(1/128),
          'v_mul_f32 v9, %s, v9' % fl(8.0),
          'v_cndmask_b32 v10, v8, 0.5, vcc',
          'v_mov_b32 v11, %s' % fl(0.25),
          'v_cndmask_b32 v11, v11, 0, vcc',
          'v_mul_f32 v12, v8, v9',
          'v_fma_f32 v13, v10, v9, v11']
    for j in range(8):
        L += ['v_cos_f32 v%d, v12' % (16+j), 'v_cos_f32 v%d, v13' % (24+j)]
        if j < 7: L += ['v_add_f32 v12, v12, v8', 'v_add_f32 v13, v13, v10']
    L += ['v_and_b32 v14, 1, v0', 'v_cmp_eq_u32 vcc, 1, v14',
          's_mov_b32 s23, 0x80008000',
          'v_mul_lo_u32 v14, v14, s23',
          'v_bfe_u32 v15, v0, 1, 1', 'v_mul_lo_u32 v15, v15, s23',
          'v_xor_b32 v12, v14, v15']
    for q in range(4):
        L += ['v_cvt_pk_bf16_f32 v%d, v%d, v%d' % (32+q, 16+2*q, 17+2*q),
              'v_cvt_pk_bf16_f32 v%d, v%d, v%d' % (36+q, 24+2*q, 25+2*q)]
    for q in range(4):
        L += ['v_cndmask_b32 v%d, v%d, v%d, vcc' % (40+q, 32+q, 36+q),
              'v_cndmask_b32 v%d, v%d, v%d, vcc' % (44+q, 36+q, 32+q)]
    for q in range(4):
        L += ['v_xor_b32 v%d, v%d, v15' % (40+q, 40+q), 'v_xor_b32 v%d, v%d, v12' % (44+q, 44+q)]
    for q in range(16):
        L += ['v_xor_b32 v%d, v%d, v14' % (48+q, 32+q)]
    L += ['v_bfe_u32 v5, v0, 2, 2', 'v_lshl_add_u32 v5, v2, 3, v5', 'v_lshlrev_b32 v5, 6, v5',
          'v_and_b32 v6, 1, v2', 'v_lshl_add_u32 v5, v6, 5, v5',
          'v_and_b32 v6, 3, v0', 'v_lshl_add_u32 v5, v6, 3, v5', 'v_xor_b32 v6, 32, v5',
          's_mov_b32 s23, %d' % US, 'v_mul_lo_u32 v4, v7, s23', 'v_lshl_add_u32 v4, v2, 4, v4',
          's_lshl_b32 s18, s16, 11', 's_lshl_b32 s19, s17, 7', 's_add_u32 s18, s18, s19']
    return L
def p1_main(stmod=''):
    L = ['s_waitcnt vmcnt(0)', 's_barrier']
    for dt in range(2):
        for ks in range(4):
            for hh in range(2):
                a = 64 + 8*ks + 4*dt + 2*hh
                L += ['ds_read_b64_tr_b16 v[%d:%d], v%d offset:%d' % (a, a+1, 5+dt, ks*2048 + hh*256)]
    n = 16
    for dt in range(2):
        for ks in range(4):
            n -= 2
            a = 64 + 8*ks + 4*dt
            L += ['s_waitcnt lgkmcnt(%d)' % n]
            for c in range(2):
                d = 16 + 8*dt + 4*c; b = 32 + 8*ks + 4*c
                L += ['v_mfma_f32_16x16x32_bf16 v[%d:%d], v[%d:%d], v[%d:%d], %s' % (d, d+3, a, a+3, b, b+3, '0' if ks == 0 else 'v[%d:%d]' % (d, d+3))]
            if dt == 1 and ks == 2:
                for r in range(4): L += ['v_cvt_pk_bf16_f32 v%d, v%d, v%d' % (8+r, 16+r, 20+r)]
                L += ['buffer_store_dwordx4 v[8:11], v4, s[12:15], s18 offen' + stmod]
    for r in range(4): L += ['v_cvt_pk_bf16_f32 v%d, v%d, v%d' % (12+r, 24+r, 28+r)]
    L += ['buffer_store_dwordx4 v[12:15], v4, s[12:15], s18 offen offset:64' + stmod]
    return L

def p2_addr():
    return ['s_and_b32 s28, s2, 7', 's_lshr_b32 s31, s2, 5', 's_lshl_b32 s31, s31, 3', 's_or_b32 s28, s28, s31',
            's_bfe_u32 s29, s2, 0x20003',
            's_mul_i32 s32, s28, %d' % US, 's_add_u32 s33, s32, 4096',
            'v_and_b32 v1, 15, v0', 'v_bfe_u32 v2, v0, 4, 2', 'v_lshrrev_b32 v3, 6, v0',
            'v_lshlrev_b32 v96, 13, v2', 'v_lshl_add_u32 v96, v3, 9, v96', 'v_lshl_add_u32 v96, v1, 4, v96']
def p2_load(ldmod=''):
    L = []
    for hh in range(2):
        for i4 in range(4):
            a = 64 + 16*hh + 4*i4
            L += ['buffer_load_dwordx4 v[%d:%d], v96, s[12:15], s%d offen offset:%d%s' % (a, a+3, 32 + i4//2, (i4 % 2)*2048 + hh*256, ldmod)]
    return L
def p2_const():
    L = []
    L += ['s_sub_u32 s31, 128, s28', 's_cmp_eq_u32 s28, 0', 's_cselect_b32 s31, 64, s31',
          's_cselect_b32 s36, 0, 1.0',
          's_cselect_b32 s37, 1.0, -1.0',
          's_cselect_b32 s38, 0, %s' % fl(-0.25),
          's_cmp_lt_u32 s29, 2',
          's_cselect_b32 s30, s28, s31',
          's_cselect_b32 s34, 1.0, s36',
          's_cselect_b32 s35, s36, s37',
          's_cselect_b32 s38, %s, s38' % fl(-0.25),
          's_and_b32 s31, s29, 1', 's_lshl_b32 s31, s31, 10', 's_add_u32 s30, s30, s31']
    L += ['v_lshrrev_b32 v8, 2, v1', 'v_and_b32 v9, 1, v1', 'v_lshl_add_u32 v8, v8, 1, v9',
          'v_lshl_add_u32 v8, v8, 7, s30', 'v_cvt_f32_u32 v8, v8', 'v_mul_f32 v8, %s, v8' % fl(1/2048),
          'v_cvt_f32_u32 v10, v2', 'v_mul_f32 v10, 4.0, v10',
          'v_bfe_u32 v9, v1, 1, 1', 'v_cvt_f32_u32 v9, v9', 'v_mul_f32 v9, %s, v9' % fl(0.25),
          'v_fma_f32 v11, v8, v10, v9', 'v_add_f32 v12, s38, v11']
    for jj in range(4):
        L += ['v_cos_f32 v%d, v11' % (16+2*jj), 'v_cos_f32 v%d, v12' % (17+2*jj)]
        if jj < 3: L += ['v_add_f32 v11, v11, v8', 'v_add_f32 v12, v12, v8']
    for jj in range(4):
        L += ['v_mul_f32 v%d, s34, v%d' % (16+2*jj, 16+2*jj), 'v_mul_f32 v%d, s35, v%d' % (17+2*jj, 17+2*jj)]
    for jj in range(4): L += ['v_cvt_pk_bf16_f32 v%d, v%d, v%d' % (100+jj, 16+2*jj, 17+2*jj)]
    L += ['v_mul_u32_u24 v97, %d, v1' % HS, 'v_lshl_add_u32 v97, v3, 8, v97', 'v_lshl_add_u32 v97, v2, 5, v97']
    L += ['v_and_b32 v9, 1, v2', 'v_lshlrev_b32 v8, 1, v9', 'v_lshl_add_u32 v8, v3, 2, v8', 'v_mul_u32_u24 v98, %d, v8' % HS,
          'v_lshrrev_b32 v13, 1, v2', 'v_lshl_add_u32 v98, v13, 9, v98',
          'v_lshrrev_b32 v8, 2, v1', 'v_lshl_add_u32 v98, v8, 6, v98',
          'v_and_b32 v8, 3, v1', 'v_lshl_add_u32 v98, v8, 3, v98']
    L += ['v_cvt_f32_u32 v14, v1',
          'v_mul_f32 v8, %s, v14' % fl(-1/16),
          'v_cvt_f32_u32 v13, v13', 'v_mul_f32 v13, %s, v13' % fl(8.0),
          'v_cvt_f32_u32 v9, v9', 'v_mul_f32 v9, %s, v9' % fl(0.25),
          'v_fma_f32 v11, v8, v13, v9']
    for j in range(8):
        L += ['v_cos_f32 v%d, v11' % (16+j), 'v_sin_f32 v%d, v11' % (24+j)]
        if j < 7: L += ['v_add_f32 v11, v11, v8']
    for q in range(4):
        L += ['v_cvt_pk_bf16_f32 v%d, v%d, v%d' % (104+q, 16+2*q, 17+2*q), 'v_cvt_pk_bf16_f32 v%d, v%d, v%d' % (108+q, 24+2*q, 25+2*q)]
    L += ['v_mul_f32 v8, %s, v14' % fl(1/512), 'v_mul_f32 v11, v8, v10', 'v_mul_f32 v9, %s, v14' % fl(1/32), 'v_add_f32 v12, v11, v9']
    for r in range(4):
        L += ['v_cos_f32 v%d, v11' % (112+r), 'v_sin_f32 v%d, v11' % (120+r), 'v_cos_f32 v%d, v12' % (116+r), 'v_sin_f32 v%d, v12' % (124+r)]
        if r < 3: L += ['v_add_f32 v11, v11, v8', 'v_add_f32 v12, v12, v8']
    L += ['v_mul_f32 v11, v9, v10']
    for r in range(4):
        L += ['v_cos_f32 v%d, v11' % (16+r), 'v_sin_f32 v%d, v11' % (20+r)]
        if r < 3: L += ['v_add_f32 v11, v11, v9']
    L += ['v_and_b32 v8, 1, v1', 's_mov_b32 s31, 0x80008000', 'v_mul_lo_u32 v8, v8, s31', 's_mov_b32 s31, 0x80000000']
    for q in range(2):
        L += ['v_cvt_pk_bf16_f32 v%d, v%d, v%d' % (128+q, 16+2*q, 17+2*q), 'v_cvt_pk_bf16_f32 v%d, v%d, v%d' % (132+q, 20+2*q, 21+2*q)]
    for q in range(2):
        L += ['v_xor_b32 v%d, v%d, v8' % (130+q, 128+q), 'v_xor_b32 v%d, v%d, v8' % (134+q, 132+q)]
    for q in range(8): L += ['v_xor_b32 v%d, s31, v%d' % (136+q, 128+q)]
    L += ['v_lshlrev_b32 v99, 18, v3', 'v_lshl_add_u32 v99, v1, 5, v99', 'v_and_b32 v8, 1, v2', 'v_lshl_add_u32 v99, v8, 9, v99',
          'v_lshrrev_b32 v8, 1, v2', 'v_lshl_add_u32 v99, v8, 4, v99',
          's_lshl_b32 s34, s30, 10', 's_add_u32 s35, s34, 131072']
    return L
def p2_main():
    L = []
    M = 'v_mfma_f32_16x16x32_bf16 v[%d:%d], v[%d:%d], v[%d:%d], %s'
    for hh in range(2):
        a = 64 + 16*hh
        L += ['s_waitcnt vmcnt(%d)' % (4 - 4*hh)]
        for i in range(4):
            for k in range(i+1, 4): L += ['v_swap_b32 v%d, v%d' % (a+4*i+k, a+4*k+i)]
        for dd in range(4):
            d = 16 + 16*hh + 4*dd
            L += [M % (d, d+3, a+4*dd, a+4*dd+3, 100, 103, '0')]
    for hh in range(2):
        d = 16 + 16*hh; o = 48 + 8*hh
        for r in range(4):
            L += ['v_cvt_pk_bf16_f32 v%d, v%d, v%d' % (o+2*r, d+r, d+4+r), 'v_cvt_pk_bf16_f32 v%d, v%d, v%d' % (o+2*r+1, d+8+r, d+12+r)]
            if r % 2: L += ['ds_write_b128 v97, v[%d:%d] offset:%d' % (o+2*r-2, o+2*r+1, 128*hh + 16*(r//2))]
    L += ['s_waitcnt lgkmcnt(0)', 's_barrier']
    for il in range(2):
        for mt in range(2):
            for hh in range(2):
                a = 64 + 8*il + 4*mt + 2*hh
                L += ['ds_read_b64_tr_b16 v[%d:%d], v98 offset:%d' % (a, a+1, il*HS + 256*hh + 32*mt)]
    n = 8
    for il in range(2):
        for mt in range(2):
            n -= 2
            a = 64 + 8*il + 4*mt; d = 16 + 16*il + 4*mt
            L += ['s_waitcnt lgkmcnt(%d)' % n, M % (d, d+3, a, a+3, 104, 107, '0'), M % (d+8, d+11, a, a+3, 108, 111, '0')]
    for il in range(2):
        d = 16 + 16*il; o = 48
        for q in range(8):
            L += ['v_mul_f32 v%d, v%d, v%d' % (o+q, d+q, 112+q), 'v_mul_f32 v%d, v%d, v%d' % (o+8+q, d+8+q, 112+q)]
        for q in range(8):
            L += ['v_fmac_f32 v%d, v%d, v%d' % (o+q, d+8+q, 120+q), 'v_fma_f32 v%d, -v%d, v%d, v%d' % (o+8+q, d+q, 120+q, o+8+q)]
        a = 80 + 8*il
        for q in range(8): L += ['v_cvt_pk_bf16_f32 v%d, v%d, v%d' % (a+q, o+2*q, o+2*q+1)]
        y = 64 + 8*il
        for nt in range(2):
            L += [M % (y+4*nt, y+4*nt+3, a, a+3, 128+8*nt, 131+8*nt, '0')]
        for nt in range(2):
            L += [M % (y+4*nt, y+4*nt+3, a+4, a+7, 132+8*nt, 135+8*nt, 'v[%d:%d]' % (y+4*nt, y+4*nt+3))]
    for il in range(2):
        y = 64 + 8*il; o = 8 + 4*il
        for q in range(4): L += ['v_cvt_pk_bf16_f32 v%d, v%d, v%d' % (o+q, y+2*q, y+2*q+1)]
        L += ['v_permlane16_swap_b32 v%d, v%d' % (o, o+2), 'v_permlane16_swap_b32 v%d, v%d' % (o+1, o+3)]
        L += ['buffer_store_dwordx4 v[%d:%d], v99, s[24:27], s%d offen' % (o, o+3, 34+il)]
    return L

def kernel(name, body):
    return ['.globl %s' % name, '.p2align 8', '.type %s,@function' % name, '%s:' % name] + fix(body)
def desc(name, vg, sg=48):
    return ['.p2align 6', '.amdhsa_kernel %s' % name, '  .amdhsa_next_free_vgpr %d' % vg, '  .amdhsa_next_free_sgpr %d' % sg,
            '  .amdhsa_accum_offset %d' % ((vg+3)//4*4), '  .amdhsa_group_segment_fixed_size 0', '  .amdhsa_kernarg_size 64',
            '  .amdhsa_user_sgpr_count 2', '  .amdhsa_user_sgpr_kernarg_segment_ptr 1', '  .amdhsa_system_sgpr_workgroup_id_x 1', '.end_amdhsa_kernel']
WSB = 64*US
def two_kernel():
    k1 = ['s_cmp_ge_u32 s2, 256', 's_cbranch_scc1 L_end1',
          's_load_dwordx2 s[4:5], s[0:1], 0', 's_load_dwordx2 s[6:7], s[0:1], 56'] + p1_load() + srd(12, 6, WSB) + p1_const() + p1_main() + ['L_end1:', 's_endpgm']
    k2 = ['s_cmp_ge_u32 s2, 256', 's_cbranch_scc1 L_end2',
          's_load_dwordx2 s[4:5], s[0:1], 40', 's_load_dwordx2 s[6:7], s[0:1], 56'] + p2_addr() + ['s_waitcnt lgkmcnt(0)'] + srd(12, 6, WSB) + p2_load() + srd(24, 4, 2097152) + p2_const() + p2_main() + ['L_end2:', 's_endpgm']
    o = [HDR.rstrip('\n'),
         '; @launch kernel=fnet_p1_kernel grid=(256,1,1) block=(256,1,1) lds=8192',
         '; @launch kernel=fnet_p2_kernel grid=(256,1,1) block=(256,1,1) lds=%d' % (16*HS),
         '.amdgcn_target "amdgcn-amd-amdhsa--gfx950"', '.text']
    o += kernel('fnet_p1_kernel', k1) + kernel('fnet_p2_kernel', k2)
    o += ['.section .rodata,"a"'] + desc('fnet_p1_kernel', 96) + desc('fnet_p2_kernel', 144)
    return '\n'.join(o) + '\n'
if __name__ == '__main__':
    open(sys.argv[1], 'w').write(two_kernel())
```

```python
import sys
from gen import *
def stamp(i, on): return ['s_memrealtime s[%d:%d]' % (48+2*i, 49+2*i), 's_waitcnt lgkmcnt(0)'] if on else []
def dump(n, on):
    if not on: return []
    L = ['s_waitcnt vmcnt(0)'] + stamp(n-1, True) + ['s_mov_b32 s14, 0x10000000', 's_lshl_b32 s31, s2, 7', 's_add_u32 s31, s31, %d' % (128 << 20),
         'v_cmp_eq_u32 vcc, 0, v0', 's_and_saveexec_b64 s[44:45], vcc', 's_cbranch_execz L_end', 'v_mov_b32 v4, 0']
    for i in range(n):
        L += ['v_mov_b32 v6, s%d' % (48+2*i), 'v_mov_b32 v7, s%d' % (49+2*i), 'buffer_store_dwordx2 v[6:7], v4, s[12:15], s31 offen offset:%d' % (8*i), 's_nop 1']
    return L
def fused(sync='byte', st=False, early=True, ldmod=' sc1', stmod=' sc1', nctr=2):
    K = ['s_cmp_ge_u32 s2, 256', 's_cbranch_scc1 L_end'] + stamp(0, st)
    K += ['s_load_dwordx2 s[4:5], s[0:1], 0', 's_load_dwordx4 s[40:43], s[0:1], 40', 's_load_dwordx2 s[6:7], s[0:1], 56']
    K += p1_load() + stamp(1, st) + srd(12, 6, WSB) + p1_const() + p2_addr() + srd(24, 40, 2097152)
    K += ['s_mov_b32 s40, s42', 's_and_b32 s41, s43, 0xffff', 's_mov_b32 s42, 256', 's_mov_b32 s43, 0x20000']
    if early: K += p2_const()
    K += stamp(2, st)
    m = p1_main(stmod)
    K += m[:2] + stamp(3, st) + m[2:] + stamp(4, st)
    if not early: K += p2_const()
    K += ['s_waitcnt vmcnt(0)', 's_barrier'] + stamp(5, st)
    K += ['s_cmp_lg_u32 s20, 0', 's_cbranch_scc1 L_go']
    if sync == 'byte':
        K += ['v_mov_b32 v4, 1', 'v_mov_b32 v5, s2', 's_mov_b64 exec, 1', 'buffer_store_byte v4, v5, s[40:43], 0 offen sc1', 's_mov_b64 exec, -1',
              'v_lshlrev_b32 v5, 2, v0', 's_mov_b32 s46, 0x01010101']
    else:
        K += ['v_mov_b32 v4, 1', 's_and_b32 s46, s2, %d' % (nctr-1), 's_mul_i32 s46, s46, %d' % (256//nctr), 'v_mov_b32 v5, s46', 's_mov_b64 exec, 1',
              'buffer_atomic_add v4, v5, s[40:43], 0 offen sc1', 's_mov_b64 exec, -1',
              'v_and_b32 v5, %d, v0' % (nctr-1), 'v_mul_u32_u24 v5, %d, v5' % (256//nctr), 's_mov_b32 s46, %d' % (256//nctr)]
    K += ['s_mov_b32 s47, 0', 'L_poll:', 'buffer_load_dword v4, v5, s[40:43], 0 offen sc1', 's_add_u32 s47, s47, 1', 's_cmp_ge_u32 s47, 20000', 's_cbranch_scc1 L_go',
          's_waitcnt vmcnt(0)', 'v_cmp_ne_u32 vcc, s46, v4', 's_nop 4', 's_cbranch_vccnz L_poll', 'L_go:', 's_barrier'] + stamp(6, st)
    K += p2_load(ldmod)
    m = p2_main()
    i = m.index('s_barrier')
    K += m[:i+1] + stamp(7, st) + m[i+1:] + stamp(8, st) + dump(10, st) + ['L_end:', 's_endpgm']
    o = [HDR.rstrip('\n'), '; @launch grid=(256,1,1) block=(256,1,1) lds=%d' % (16*HS)] + (['; nstamps=10'] if st else []) + ['.amdgcn_target "amdgcn-amd-amdhsa--gfx950"', '.text']
    o += kernel(NAME + '_kernel', K) + ['.section .rodata,"a"'] + desc(NAME + '_kernel', 144, 80)
    return '\n'.join(o) + '\n'
if __name__ == '__main__':
    open('f_byte.s', 'w').write(fused('byte'))
    open('f_at2.s', 'w').write(fused('atomic', nctr=2))
    open('f_at64.s', 'w').write(fused('atomic', nctr=64))
    open('f_byte_st.s', 'w').write(fused('byte', True))
    open('f_at2_st.s', 'w').write(fused('atomic', True, nctr=2))
    open('f_at64_st.s', 'w').write(fused('atomic', True, nctr=64))
```

```python
import sys
import gen
from gen import fl, srd, kernel, desc, HDR, NAME, HS, p1_load, p2_const
from fused import stamp, dump
US = 49152 + 256
EOFF = 64*US
WSB = EOFF + 128
M = 'v_mfma_f32_16x16x32_bf16 v[%d:%d], v[%d:%d], v[%d:%d], %s'
def p1_const():
    L = gen.p1_const()
    i = L.index('s_mov_b32 s23, %d' % gen.US)
    return L[:i] + ['v_mul_u32_u24 v4, %d, v7' % US, 'v_lshl_add_u32 v4, v2, 4, v4',
                    's_mul_i32 s18, s16, 3072', 's_lshl_b32 s19, s17, 6', 's_add_u32 s18, s18, s19']
def slot(dt, r):
    k = 4*dt + r
    return k // 3, k % 3
def p1_main(stmod):
    L = []
    for dt in range(2):
        for ks in range(4):
            for hh in range(2):
                a = 64 + 8*ks + 4*dt + 2*hh
                L += ['ds_read_b64_tr_b16 v[%d:%d], v%d offset:%d' % (a, a+1, 5+dt, ks*2048 + hh*256)]
    n = 16
    def cv(dt, r):
        q, sl = slot(dt, r)
        return 'v_cvt_pk_bf16_f32 v%d, v%d, v%d' % (144+4*q+sl, 16+8*dt+r, 20+8*dt+r)
    def stq(q): return 'buffer_store_dwordx4 v[%d:%d], v4, s[12:15], s18 offen offset:%d%s' % (144+4*q, 147+4*q, 1024*q, stmod)
    for dt in range(2):
        for ks in range(4):
            n -= 2
            a = 64 + 8*ks + 4*dt
            L += ['s_waitcnt lgkmcnt(%d)' % n]
            for c in range(2):
                d = 16 + 8*dt + 4*c; b = 32 + 8*ks + 4*c
                L += [M % (d, d+3, a, a+3, b, b+3, '0' if ks == 0 else 'v[%d:%d]' % (d, d+3))]
            if dt == 1 and ks == 2: L += [cv(0,0), cv(0,1), cv(0,2), stq(0), cv(0,3)]
    L += [cv(1,0), cv(1,1), stq(1), cv(1,2), cv(1,3), stq(2)]
    return L
def p2_addr():
    return ['s_and_b32 s28, s2, 7', 's_lshr_b32 s31, s2, 5', 's_lshl_b32 s31, s31, 3', 's_or_b32 s28, s28, s31',
            's_bfe_u32 s29, s2, 0x20003',
            's_mul_i32 s68, s28, %d' % US, 's_add_u32 s69, s68, 3072', 's_add_u32 s70, s68, 6144', 's_add_u32 s71, s68, 9216',
            'v_mul_u32_u24 v96, 12288, v2', 'v_lshl_add_u32 v96, v3, 8, v96', 'v_lshl_add_u32 v96, v1, 4, v96']
def p2_loads(ldmod):
    L = []
    for q in range(3):
        for i4 in range(4):
            a = 48 + 16*q + 4*i4
            L += ['buffer_load_dwordx4 v[%d:%d], v96, s[12:15], s%d offen offset:%d%s' % (a, a+3, 68+i4, 1024*q, ldmod)]
    return L
def p2_check():
    L = []
    for q in range(3):
        t = [48 + 16*q + 4*i4 + 3 for i4 in range(4)]
        L += ['s_waitcnt vmcnt(%d)' % (8 - 4*q)]
        for i in range(4): L += ['v_xor_b32 v%d, s72, v%d' % (8+i, t[i])]
        L += ['v_or3_b32 v8, v8, v9, v10']
        L += ['v_or_b32 v12, v8, v11'] if q == 0 else ['v_or3_b32 v12, v8, v11, v12']
    L += ['v_cmpx_ne_u32 vcc, 0, v12']
    return L
def p2_stepB():
    L = []
    for q in range(3):
        a = 48 + 16*q
        nc = 3 if q < 2 else 2
        for i in range(nc):
            for k in range(i+1, 4): L += ['v_swap_b32 v%d, v%d' % (a+4*i+k, a+4*k+i)]
        for sl in range(nc):
            d = 16 + 4*(3*q + sl)
            L += [M % (d, d+3, a+4*sl, a+4*sl+3, 100, 103, '0')]
    for dt in range(2):
        d = 16 + 16*dt; o = 48 + 8*dt
        for rr in range(4):
            L += ['v_cvt_pk_bf16_f32 v%d, v%d, v%d' % (o+2*rr, d+rr, d+4+rr), 'v_cvt_pk_bf16_f32 v%d, v%d, v%d' % (o+2*rr+1, d+8+rr, d+12+rr)]
            if rr % 2: L += ['ds_write_b128 v97, v[%d:%d] offset:%d' % (o+2*rr-2, o+2*rr+1, 32*dt + 16*(rr//2))]
    return L + ['s_waitcnt lgkmcnt(0)', 's_barrier']
def build(st=False, n_early=0, n_mid=1000, pref=True, ldmod=' sc1', stmod=' sc1'):
    c2 = [x.replace('v_lshl_add_u32 v97, v2, 5, v97', 'v_lshl_add_u32 v97, v2, 6, v97') for x in p2_const()]
    K = ['s_load_dwordx2 s[4:5], s[0:1], 0', 's_load_dwordx2 s[6:7], s[0:1], 56', 's_load_dwordx2 s[40:41], s[0:1], 40']
    K += ['s_cmp_ge_u32 s2, 256', 's_cbranch_scc1 L_end']
    if st: K += ['s_memrealtime s[48:49]']
    if pref: K += ['s_getpc_b64 s[42:43]', 'v_and_b32 v1, 31, v0', 'v_lshlrev_b32 v1, 7, v1', 'global_load_dword v160, v1, s[42:43]']
    K += p1_load() + ['s_add_u32 s44, s6, %d' % EOFF, 's_addc_u32 s45, s7, 0', 's_load_dword s73, s[44:45], 0']
    if st: K += ['s_memrealtime s[50:51]']
    K += srd(12, 6, WSB) + p1_const() + p2_addr() + srd(24, 40, 2097152) + c2[:n_early]
    K += ['s_waitcnt lgkmcnt(0)', 's_add_u32 s72, s73, 0x9e3779b9', 'v_mov_b32 v147, s72', 'v_mov_b32 v151, s72', 'v_mov_b32 v154, s72', 'v_mov_b32 v155, s72']
    K += stamp(2, st) + ['s_waitcnt vmcnt(0)', 's_barrier'] + stamp(3, st) + p1_main(stmod) + stamp(4, st)
    K += c2[n_early:n_mid] + stamp(5, st) + p2_loads(ldmod) + c2[n_mid:]
    K += ['s_mov_b32 s47, 0', 's_branch L_chk', 'L_retry:'] + p2_loads(ldmod) + ['L_chk:'] + p2_check()
    K += ['s_add_u32 s47, s47, 1', 's_cmp_lt_u32 s47, 0x4000', 's_cselect_b64 exec, exec, 0', 's_cbranch_execnz L_retry', 's_mov_b64 exec, -1']
    K += stamp(6, st) + p2_stepB() + stamp(7, st)
    m = gen.p2_main(); m = m[m.index('s_barrier')+1:]
    K += m + stamp(8, st)
    K += ['s_or_b32 s31, s2, s20', 's_cbranch_scc1 L_nb', 's_add_u32 s73, s73, 1', 'v_mov_b32 v4, s73', 'v_mov_b32 v5, %d' % EOFF, 's_mov_b64 exec, 1',
          'buffer_store_dword v4, v5, s[12:15], 0 offen', 's_mov_b64 exec, -1', 'L_nb:']
    if st: K += ['s_mul_i32 s47, s47, 100', 's_add_u32 s68, s48, s47', 's_addc_u32 s69, s49, 0']
    d = dump(10, st)
    if st: d += ['v_mov_b32 v6, s68', 'v_mov_b32 v7, s69', 'buffer_store_dwordx2 v[6:7], v4, s[12:15], s31 offen offset:80']
    K += d + ['L_end:', 's_endpgm', '.fill 256, 4, 0xbf810000']
    o = [HDR.rstrip('\n'), '; @launch grid=(256,1,1) block=(256,1,1) lds=%d' % (16*HS)] + (['; nstamps=11'] if st else []) + ['.amdgcn_target "amdgcn-amd-amdhsa--gfx950"', '.text']
    o += kernel(NAME + '_kernel', K) + ['.section .rodata,"a"'] + desc(NAME + '_kernel', 164, 80)
    return '\n'.join(o) + '\n'
if __name__ == '__main__':
    print(len(p2_const()))
    open('t_a.s', 'w').write(build())
    open('t_a_st.s', 'w').write(build(True))
    open('t_b.s', 'w').write(build(False, 60, 130))
    open('t_b_st.s', 'w').write(build(True, 60, 130))
    open('t_c.s', 'w').write(build(False, 60, 60))
    open('t_c_st.s', 'w').write(build(True, 60, 60))
```

```python
import sys
from gen import fl, srd, kernel, desc, HDR, NAME
from fused import stamp, dump
US = 32768 + 256
EOFF = 64*US
WSB = EOFF + 128
CDV = 0
SWAP = 4
HS = 528
HB = 8192
HX = HB + 16*HS
TW = HX + 512
LDS = TW + 4*1280
M = 'v_mfma_f32_16x16x32_bf16 v[%d:%d], v[%d:%d], v[%d:%d], %s'
def R(a, n=4): return 'v[%d:%d]' % (a, a+n-1)
def mf(d, a, b, c=None): return M % (d, d+3, a, a+3, b, b+3, '0' if c is None else R(c))
def cvt(d, a, b): return 'v_cvt_pk_bf16_f32 v%d, v%d, v%d' % (d, a, b)
def p1_load(xm):
    L = ['s_and_b32 s18, s2, 7', 's_sub_u32 s19, 16, s18', 's_min_u32 s21, s18, 1', 's_cselect_b32 s19, 8, s19',
         's_bitcmp1_b32 s2, 3', 's_cselect_b32 s16, s19, s18', 's_lshr_b32 s17, s2, 4',
         'v_lshrrev_b32 v4, 1, v0', 'v_lshl_add_u32 v5, v4, 4, s16',
         'v_and_b32 v6, 1, v0', 'v_lshlrev_b32 v6, 4, v6',
         'v_lshrrev_b32 v3, 6, v0',
         'v_lshl_add_u32 v4, v5, 10, v6',
         'v_sub_u32 v5, 0, v5', 'v_readfirstlane_b32 s20, v3', 'v_and_b32 v5, 2047, v5', 'v_lshl_add_u32 v5, v5, 10, v6',
         's_lshl_b32 s18, s17, 5', 's_sub_u32 s19, 992, s18',
         's_lshl_b32 m0, s20, 10']
    if SWAP is not None:
        L += ['s_bitcmp1_b32 s2, %d' % SWAP, 's_cbranch_scc0 L_ns', 'v_swap_b32 v4, v5', 's_mov_b32 s21, s18', 's_mov_b32 s18, s19', 's_mov_b32 s19, s21', 's_or_b32 m0, m0, 4096', 'L_ns:']
    L += ['s_waitcnt lgkmcnt(0)']
    L += srd(8, 4, 2097152)
    L += ['buffer_load_dwordx4 v4, s[8:11], s18 offen%s lds' % xm, 's_xor_b32 m0, m0, 4096', 'buffer_load_dwordx4 v5, s[8:11], s19 offen%s lds' % xm]
    return L
def p1_const():
    L = ['v_and_b32 v1, 15, v0', 'v_bfe_u32 v2, v0, 4, 2', 'v_lshl_add_u32 v7, v3, 4, v1',
         'v_cmp_eq_u32 vcc, 0, v7', 'v_cvt_f32_u32 v8, v7', 'v_cvt_f32_u32 v157, v2',
         'v_mul_f32 v8, %s, v8' % fl(1/128), 'v_mul_f32 v157, 4.0, v157',
         'v_cndmask_b32 v10, v8, 0.5, vcc', 'v_mov_b32 v11, %s' % fl(0.25), 'v_cndmask_b32 v11, v11, 0, vcc',
         'v_mul_f32 v12, v8, v157', 'v_fma_f32 v13, v10, v157, v11']
    for j in range(8):
        L += ['v_cos_f32 v%d, v12' % (16+j), 'v_cos_f32 v%d, v13' % (24+j)]
        if j == 3: L += ['v_fmamk_f32 v12, v8, %s, v12' % fl(13.0), 'v_fmamk_f32 v13, v10, %s, v13' % fl(13.0)]
        elif j < 7: L += ['v_add_f32 v12, v12, v8', 'v_add_f32 v13, v13, v10']
    L += ['v_and_b32 v14, 1, v0', 'v_cmp_eq_u32 vcc, 1, v14', 's_mov_b32 s21, 0x80008000', 'v_mul_lo_u32 v14, v14, s21',
          'v_bfe_u32 v15, v0, 1, 1', 'v_mul_lo_u32 v15, v15, s21', 'v_xor_b32 v12, v14, v15']
    for q in range(4): L += [cvt(32+q, 16+2*q, 17+2*q), cvt(36+q, 24+2*q, 25+2*q)]
    for q in range(4): L += ['v_cndmask_b32 v%d, v%d, v%d, vcc' % (40+q, 32+q, 36+q), 'v_cndmask_b32 v%d, v%d, v%d, vcc' % (44+q, 36+q, 32+q)]
    for q in range(4): L += ['v_xor_b32 v%d, v%d, v15' % (40+q, 40+q), 'v_xor_b32 v%d, v%d, v12' % (44+q, 44+q)]
    for q in range(16): L += ['v_xor_b32 v%d, v%d, v14' % (48+q, 32+q)]
    L += ['v_and_b32 v5, 63, v0', 'v_lshlrev_b32 v5, 3, v5', 'v_xor_b32 v6, 24, v5',
          'v_mul_u32_u24 v7, 80, v7', 'v_mov_b32 v180, 0', 'v_mov_b32 v181, 0', 'v_mov_b32 v182, 0', 'v_mov_b32 v183, 0', 'v_lshl_add_u32 v7, v2, 4, v7',
          'v_bfe_u32 v8, v0, 3, 3', 'v_lshl_add_u32 v8, v3, 4, v8', 'v_and_b32 v9, 7, v0',
          'v_mul_u32_u24 v4, %d, v8' % US, 'v_lshl_add_u32 v4, v9, 4, v4', 'v_mul_u32_u24 v159, 80, v8', 'v_lshl_add_u32 v158, v9, 3, v159',
          's_lshl_b32 s18, s16, 11', 's_lshl_b32 s19, s17, 7', 's_add_u32 s18, s18, s19', 's_add_u32 s19, s18, %d' % (8*US)]
    return L
def p1_stage():
    return ['s_waitcnt vmcnt(0)', 's_barrier']
def p1_main(stmod, mid):
    L = []
    for dt in (1, 0):
        for ks in range(4):
            for hh in range(2):
                a = 64 + 8*ks + 4*dt + 2*hh
                L += ['ds_read_b64_tr_b16 %s, v%d offset:%d' % (R(a, 2), 5+dt, dt*4096 + ks*1024 + hh*512)]
    def Mx(dt, ks, c):
        d = 16 + 8*dt + 4*c
        return mf(d, 64+8*ks+4*dt, 32+8*ks+4*c, None if ks == 0 else d)
    W = lambda n: 's_waitcnt lgkmcnt(%d)' % n
    for ks in range(4): L += [W(14-2*ks), Mx(1, ks, 0), Mx(1, ks, 1)]
    L += [W(6), Mx(0,0,0), Mx(0,0,1), W(4), Mx(0,1,0), W(2), Mx(0,2,0), 's_nop 0', cvt(68, 24, 28), W(0), Mx(0,3,0),
          'v_permlane16_swap_b32 v180, v24', 'v_permlane16_swap_b32 v181, v28', Mx(0,1,1),
          'v_permlane32_swap_b32 v182, v24', 'v_permlane32_swap_b32 v183, v28', Mx(0,2,1),
          'v_permlane16_swap_b32 v182, v180', 'v_permlane16_swap_b32 v183, v181', Mx(0,3,1), 'ds_write_b32 v7, v68 offset:%d' % (TW+16),
          'v_add_f32 v17, v17, v27', 'v_add_f32 v18, v18, v26', 'v_add_f32 v19, v19, v25', 'v_add_f32 v16, v16, v180'] + mid[:3]
    mid = mid[3:]
    L += ['v_add_f32 v21, v21, v31', 'v_add_f32 v22, v22, v30', 'v_add_f32 v23, v23, v29', 'v_add_f32 v20, v20, v181',
          cvt(69, 17, 21), cvt(70, 18, 22), cvt(71, 19, 23), cvt(68, 16, 20),
          'ds_write_b128 v7, v[68:71] offset:%d' % TW,
          'ds_read_b64 v[144:145], v158 offset:%d' % TW, 'ds_read_b32 v146, v159 offset:%d' % (TW+64),
          'ds_read_b64 v[148:149], v158 offset:%d' % (TW+640), 'ds_read_b32 v150, v159 offset:%d' % (TW+704)]
    L += mid
    L += ['s_waitcnt lgkmcnt(2)', 'buffer_store_dwordx4 v[144:147], v4, s[12:15], s18 offen' + stmod,
          's_waitcnt lgkmcnt(0)', 'buffer_store_dwordx4 v[148:151], v4, s[12:15], s19 offen' + stmod]
    return L
def p2_addr():
    return ['s_and_b32 s28, s2, 7', 's_lshr_b32 s31, s2, 5', 's_lshl_b32 s31, s31, 3', 's_or_b32 s28, s28, s31', 's_bfe_u32 s29, s2, 0x20003',
            's_mul_i32 s68, s28, %d' % US, 's_add_u32 s69, s68, 4096',
            'v_lshlrev_b32 v152, 13, v2', 'v_lshl_add_u32 v152, v3, 9, v152', 'v_and_b32 v8, 8, v1', 'v_add_u32 v8, v8, v1', 'v_lshl_add_u32 v152, v8, 4, v152']
def p2_const():
    L = ['s_sub_u32 s31, 128, s28', 's_cmp_eq_u32 s28, 0', 's_cselect_b32 s31, 64, s31', 's_cselect_b32 s36, 0, 1.0',
         's_cselect_b32 s37, 1.0, -1.0', 's_cselect_b32 s38, 0, %s' % fl(-0.25), 's_cmp_lt_u32 s29, 2',
         's_cselect_b32 s30, s28, s31', 's_cselect_b32 s34, 1.0, s36', 's_cselect_b32 s35, s36, s37', 's_cselect_b32 s38, %s, s38' % fl(-0.25),
         's_and_b32 s31, s29, 1', 's_lshl_b32 s31, s31, 10', 's_add_u32 s30, s30, s31']
    L += ['v_and_b32 v8, 7, v1', 'v_lshl_add_u32 v8, v8, 7, s30', 'v_cvt_f32_u32 v8, v8', 'v_mul_f32 v8, %s, v8' % fl(1/2048),
          'v_and_b32 v9, 8, v1', 'v_cvt_f32_u32 v9, v9', 'v_mul_f32 v9, %s, v9' % fl(1/32),
          'v_fma_f32 v11, v8, v157, v9', 'v_add_f32 v12, s38, v11']
    for jj in range(4):
        L += ['v_cos_f32 v%d, v11' % (16+2*jj), 'v_cos_f32 v%d, v12' % (17+2*jj)]
        if jj < 3: L += ['v_add_f32 v11, v11, v8', 'v_add_f32 v12, v12, v8']
    for jj in range(4): L += ['v_pk_mul_f32 %s, s[34:35], %s' % (R(16+2*jj, 2), R(16+2*jj, 2))]
    for jj in range(4): L += [cvt(100+jj, 16+2*jj, 17+2*jj)]
    L += ['v_and_b32 v9, 1, v2', 'v_lshrrev_b32 v13, 1, v2', 'v_lshrrev_b32 v8, 5, v0',
          'v_mul_u32_u24 v97, %d, v1' % HS, 'v_lshl_add_u32 v97, v8, 6, v97', 'v_lshl_add_u32 v97, v9, 4, v97',
          'v_lshlrev_b32 v154, 5, v1', 'v_lshl_add_u32 v154, v8, 2, v154',
          'v_lshlrev_b32 v8, 3, v9', 'v_lshl_add_u32 v8, v3, 1, v8', 'v_mul_u32_u24 v98, %d, v8' % HS,
          'v_lshl_add_u32 v98, v13, 8, v98', 'v_lshl_add_u32 v98, v1, 3, v98',
          'v_lshlrev_b32 v155, 5, v8', 'v_lshl_add_u32 v155, v13, 4, v155',
          'v_lshlrev_b32 v99, 18, v3', 'v_lshl_add_u32 v99, v1, 6, v99', 'v_lshl_add_u32 v99, v2, 4, v99',
          's_lshl_b32 s36, s30, 10', 's_add_u32 s37, s36, 131072']
    L += ['v_and_b32 v8, 12, v1', 'v_add_u32 v8, v8, v1', 'v_cvt_f32_u32 v14, v8', 'v_add_f32 v15, 4.0, v14',
          'v_cvt_f32_u32 v13, v13', 'v_mul_f32 v13, %s, v13' % fl(8.0), 'v_cvt_f32_u32 v9, v9', 'v_mul_f32 v9, %s, v9' % fl(0.25)]
    for nt in range(2):
        L += ['v_mul_f32 v8, %s, v%d' % (fl(-1/32), 14+nt), 'v_fma_f32 v11, v8, v13, v9']
        for j in range(8):
            L += ['v_cos_f32 v%d, v11' % (16+j), 'v_sin_f32 v%d, v11' % (24+j)]
            L += ['v_add_f32 v11, v11, v8']
        L += ['v_cos_f32 v12, v11']
        for q in range(4): L += [cvt(104+8*nt+q, 16+2*q, 17+2*q), cvt(108+8*nt+q, 24+2*q, 25+2*q), cvt(140+36*nt+q, 17+2*q, 18+2*q if q < 3 else 12)]
    L += ['v_mul_f32 v8, %s, v14' % fl(1/512), 'v_mul_f32 v9, %s, v15' % fl(1/512), 'v_mul_f32 v11, v8, v157', 'v_mul_f32 v12, v9, v157']
    for r in range(4):
        L += ['v_cos_f32 v%d, v11' % (120+r), 'v_sin_f32 v%d, v11' % (128+r), 'v_cos_f32 v%d, v12' % (124+r), 'v_sin_f32 v%d, v12' % (132+r)]
        if r < 3: L += ['v_add_f32 v11, v11, v8', 'v_add_f32 v12, v12, v9']
    L += ['v_cvt_f32_u32 v8, v1', 'v_mul_f32 v8, %s, v8' % fl(1/16), 'v_mul_f32 v11, v8, v157']
    for r in range(4):
        L += ['v_cos_f32 v%d, v11' % (16+r), 'v_sin_f32 v%d, v11' % (20+r)]
        if r < 3: L += ['v_add_f32 v11, v11, v8']
    for q in range(4): L += [cvt(136+q, 16+2*q, 17+2*q)]
    L += ['s_mov_b32 vcc_lo, 0xaaaaaaaa', 's_mov_b32 vcc_hi, 0xaaaaaaaa']
    return L
def p2_loads(ldmod):
    L = []
    for p in range(2):
        for i4 in range(4):
            L += ['buffer_load_dwordx4 %s, v%d, s[12:15], s%d offen offset:%d%s' % (R(48+16*p+4*i4), 152, 68+i4//2, 128*p + 2048*(i4 % 2), ldmod)]
    return L
def p2_B(ldmod):
    cm = lambda i: 'v_cndmask_b32 v%d, v%d, v%d, vcc' % (80+i, 50+4*i, 66+4*i)
    pk = lambda d, a, b, o: 'v_pk_mov_b32 %s, %s, %s op_sel:[%d,%d]' % (R(d, 2), R(a, 2), R(b, 2), o, o)
    xr = lambda d, t: 'v_xor_b32 v%d, s72, v%d' % (d, t)
    L = ['L_retry:'] + p2_loads(ldmod) + ['s_mov_b64 exec, -1', 's_add_u32 s47, s47, 1', 's_cmp_lt_u32 s47, 0x4000', 's_cselect_b64 s[74:75], -1, 0']
    L += ['s_waitcnt vmcnt(6)', pk(84, 48, 52, 0), pk(88, 48, 52, 1), xr(8, 51), xr(9, 55),
          's_waitcnt vmcnt(4)', pk(86, 56, 60, 0), pk(90, 56, 60, 1), xr(10, 59), xr(11, 63), mf(16, 84, 100), 'v_or3_b32 v8, v8, v9, v10', mf(20, 88, 100),
          's_waitcnt vmcnt(2)', cm(0), cm(1), xr(9, 67), xr(10, 71), 'v_or3_b32 v8, v8, v9, v10', pk(36, 64, 68, 0), pk(40, 64, 68, 1)]
    L += [cvt(92+q, 16+q, 20+q) for q in range(4)] + ['ds_write_b128 v97, v[92:95] offset:%d' % HB]
    L += ['s_waitcnt vmcnt(1)', 'v_mov_b32 v38, v72', 'v_mov_b32 v42, v73', cm(2), xr(9, 75), 'v_or3_b32 v8, v8, v9, v11',
          's_waitcnt vmcnt(0)', 'v_mov_b32 v39, v76', 'v_mov_b32 v43, v77', cm(3), mf(24, 36, 100), xr(9, 79), 'v_or_b32 v8, v8, v9', mf(28, 40, 100),
          'v_cmp_ne_u32 s[76:77], 0, v8', mf(32, 80, 100), 's_and_b64 exec, s[76:77], s[74:75]', 's_cbranch_scc1 L_retry', 's_mov_b64 exec, -1']
    return L
def p2_B2():
    L = [cvt(44+q, 24+q, 28+q) for q in range(4)] + ['ds_write_b128 v97, v[44:47] offset:%d' % (HB+32)]
    L += [cvt(92, 32, 33), 'ds_write_b32 v154, v92 offset:%d' % HX, 's_waitcnt lgkmcnt(0)', 's_barrier']
    return L
def p2_CD(omod):
    L = []
    for il in range(2):
        for hh in range(2): L += ['ds_read_b64_tr_b16 %s, v98 offset:%d' % (R(64+4*il+2*hh, 2), HB + il*HS + 128*hh)]
    for il in range(2): L += ['ds_read_b128 %s, v155 offset:%d' % (R(72+4*il), HX + 32*il)]
    C = lambda il, nt, c: mf(16+16*il+8*nt+4*c, 64+4*il, 104+8*nt+4*c)
    S = lambda il, nt: mf(160+8*il+4*nt, 140+36*nt, 72+4*il)
    D = lambda il, nt: mf(160+8*il+4*nt, 80+8*il+4*nt, 136, 160+8*il+4*nt)
    O = {(0,0): 48, (0,1): 56, (1,0): 184, (1,1): 192}
    def T(il, nt):
        u = 16+16*il+8*nt; o = O[il, nt]; X = []
        for h in (0, 2): X += ['v_pk_mul_f32 %s, %s, %s' % (R(o+h, 2), R(u+h, 2), R(120+4*nt+h, 2))]
        for h in (0, 2): X += ['v_pk_mul_f32 %s, %s, %s' % (R(o+4+h, 2), R(u+4+h, 2), R(120+4*nt+h, 2))]
        for h in (0, 2): X += ['v_pk_fma_f32 %s, %s, %s, %s' % (R(o+h, 2), R(u+4+h, 2), R(128+4*nt+h, 2), R(o+h, 2))]
        for h in (0, 2): X += ['v_pk_fma_f32 %s, %s, %s, %s neg_lo:[1,0,0] neg_hi:[1,0,0]' % (R(o+4+h, 2), R(u+h, 2), R(128+4*nt+h, 2), R(o+4+h, 2))]
        return X
    def Ts(il, nt):
        u = 16+16*il+8*nt; o = O[il, nt]; c = 120+4*nt; sn = 128+4*nt
        return (['v_mul_f32 v%d, v%d, v%d' % (o+r, u+r, c+r) for r in range(4)] + ['v_mul_f32 v%d, v%d, v%d' % (o+4+r, u+4+r, c+r) for r in range(4)] +
                ['v_fmac_f32 v%d, v%d, v%d' % (o+r, u+4+r, sn+r) for r in range(4)] + ['v_fma_f32 v%d, -v%d, v%d, v%d' % (o+4+r, u+r, sn+r, o+4+r) for r in range(4)])
    V = lambda il, nt: [cvt(80+8*il+4*nt+q, O[il, nt]+2*q, O[il, nt]+2*q+1) for q in range(4)]
    oc = lambda q0: [cvt(8+q, 160+2*q, 161+2*q) for q in (q0, q0+1)]
    st = lambda il: 'buffer_store_dwordx4 %s, v99, s[24:27], s%d offen%s' % (R(8+4*il), 36+il, omod)
    L += ['s_waitcnt lgkmcnt(4)', C(0,0,0), C(0,0,1), C(0,1,0), C(0,1,1), 's_waitcnt lgkmcnt(2)', C(1,0,0), C(1,0,1), 's_waitcnt lgkmcnt(0)']
    t = Ts(0,0) + V(0,0)
    if CDV == 0:
        ms = [C(1,1,0), C(1,1,1), S(0,0), S(0,1), S(1,0), S(1,1)]
        for i, m in enumerate(ms): L += [m] + t[3*i:3*i+3]
        L += t[18:] + T(0,1) + T(1,0) + T(1,1)
        L += [D(0,0)] + V(0,1) + V(1,0)[:2] + [D(0,1)] + V(1,0)[2:] + V(1,1)[:2] + [D(1,0)] + V(1,1)[2:] + oc(0) + [D(1,1)] + oc(2) + [st(0)] + oc(4) + oc(6) + [st(1)]
    else:
        t += Ts(0,1) + V(0,1) + Ts(1,0) + V(1,0) + Ts(1,1) + V(1,1)
        ms = {0: [C(1,1,0)], 2: [C(1,1,1)], 4: [S(0,0)], 6: [S(0,1)], 8: [S(1,0)], 10: [S(1,1)], 22: [D(0,0)], 42: [D(0,1)], 52: oc(0) + oc(2) + [st(0)], 62: [D(1,0)]}
        for i, x in enumerate(t): L += ms.get(i, []) + [x]
        L += oc(4) + [D(1,1)] + oc(6) + [st(1)]
    return L
def build(st=False, n_early=0, n_mid=0, xm=' nt', ldmod=' sc1', stmod=' sc1', omod='', pre='s_waitcnt vmcnt(0)'):
    c2 = p2_const()
    K = ['s_load_dwordx2 s[4:5], s[0:1], 0', 's_load_dwordx2 s[6:7], s[0:1], 56', 's_load_dwordx2 s[40:41], s[0:1], 40']
    K += ['s_cmp_ge_u32 s2, 256', 's_cbranch_scc1 L_end']
    if st: K += ['s_memrealtime s[48:49]']
    K += ['s_getpc_b64 s[42:43]', 'v_and_b32 v1, 31, v0', 'v_lshlrev_b32 v1, 7, v1', 'global_load_dword v156, v1, s[42:43]']
    K += p1_load(xm) + ['s_add_u32 s44, s6, %d' % EOFF, 's_addc_u32 s45, s7, 0', 's_load_dword s73, s[44:45], 0']
    if st: K += ['s_memrealtime s[50:51]']
    K += srd(12, 6, WSB) + p1_const() + p2_addr() + srd(24, 40, 2097152) + c2[:n_early]
    K += ['s_waitcnt lgkmcnt(0)', 's_add_u32 s72, s73, 0x9e3779b9', 'v_mov_b32 v147, s72', 'v_mov_b32 v151, s72']
    K += stamp(2, st) + p1_stage() + stamp(3, st) + p1_main(stmod, c2[n_early:n_early+n_mid]) + stamp(4, st)
    K += c2[n_early+n_mid:] + ['s_mov_b32 s47, 0'] + pre.split(';') + stamp(5, st)
    K += p2_B(ldmod) + stamp(6, st) + p2_B2() + stamp(7, st) + p2_CD(omod) + stamp(8, st)
    K += ['s_or_b32 s31, s2, s20', 's_cbranch_scc1 L_nb', 's_add_u32 s73, s73, 1', 'v_mov_b32 v4, s73', 'v_mov_b32 v5, %d' % EOFF, 's_mov_b64 exec, 1',
          'buffer_store_dword v4, v5, s[12:15], 0 offen', 's_mov_b64 exec, -1', 'L_nb:']
    if st: K += ['s_mul_i32 s47, s47, 100', 's_add_u32 s68, s48, s47', 's_addc_u32 s69, s49, 0']
    d = dump(10, st)
    if st: d += ['v_mov_b32 v6, s68', 'v_mov_b32 v7, s69', 'buffer_store_dwordx2 v[6:7], v4, s[12:15], s31 offen offset:80']
    K += d + ['L_end:', 's_endpgm', '.fill 320, 4, 0xbf810000']
    o = [HDR.rstrip('\n'), '; @launch grid=(256,1,1) block=(256,1,1) lds=%d' % LDS] + (['; nstamps=11'] if st else []) + ['.amdgcn_target "amdgcn-amd-amdhsa--gfx950"', '.text']
    o += kernel(NAME + '_kernel', K) + ['.section .rodata,"a"'] + desc(NAME + '_kernel', 200, 80)
    return '\n'.join(o) + '\n'
if __name__ == '__main__':
    for st in (False, True):
        x = '_st' if st else ''
        CDV = 0
        open('i_a%s.s' % x, 'w').write(build(st, 0, 20))
        open('i_c%s.s' % x, 'w').write(build(st, 45, 20))
        CDV = 1
        open('i_b%s.s' % x, 'w').write(build(st, 0, 20))
```
